```python
import torch

def _softmax(x, axis=-1):
    return torch.softmax(x, dim=axis)
def _gelu(x):
    return torch.nn.functional.gelu(x, approximate="tanh")
def _silu(x):
    return torch.nn.functional.silu(x)
def _sigmoid(x):
    return torch.sigmoid(x)
def _layernorm(x, axis=-1, eps=1e-5):
    m = x.mean(dim=axis, keepdim=True)
    v = x.var(dim=axis, keepdim=True, unbiased=False)
    return (x - m) / torch.sqrt(v + eps)
def _scatter_add(tgt, idx, src, axis=0):
    return tgt.clone().index_add_(axis, idx, src)
def _segment_sum(src, seg, n):
    out = torch.zeros((n,) + src.shape[1:], dtype=src.dtype)
    return out.index_add_(0, seg, src)
def _pad(x, pw):
    flat = tuple(v for pair in reversed(pw) for v in pair)
    return torch.nn.functional.pad(x, flat)

kernel_name = 'standalone__sliding_block_cached__sampling'

def setup_inputs():

    _w = (lambda a: (lambda t: t.to(torch.bfloat16) if t.is_floating_point() else t)(torch.as_tensor(a)))
    B, Sq, D = 8, 8, 448
    Hq, Hkv, Sk, Dh = 16, 8, 8192, 256
    assert Hq % Hkv == 0, (Hq, Hkv)
    return {
        "x": _w((lambda *s: torch.randn(*s, dtype=torch.bfloat16) * 0.8)(B, Sq, D)),
        "k_cache": _w((lambda *s: torch.randn(*s, dtype=torch.bfloat16) * 0.8)(B, Hkv, Sk, Dh)),
        "v_cache": _w((lambda *s: torch.randn(*s, dtype=torch.bfloat16) * 0.05)(B, Hkv, Sk, Dh)),
        "wq": _w((lambda *s: torch.randn(*s, dtype=torch.bfloat16) * 0.8)(D, Hq * Dh) * (D ** -0.5)),
        "wo": _w((lambda *s: torch.randn(*s, dtype=torch.bfloat16) * 0.05)(Hq * Dh, D) * ((Hq * Dh) ** -0.5)),
    }

def reference(x, k_cache, v_cache, wq, wo):
    B, Sq, D = x.shape
    Hq, Dh = 16, 256
    Hkv, Sk = k_cache.shape[1], k_cache.shape[2]
    W = min(4096, max(256, Sk // 4))
    rep = Hq // Hkv
    q = (lambda x, *d: x.permute(*d))((x @ wq).reshape(B, Sq, Hq, Dh), 0, 2, 1, 3)
    k = (lambda x, n, axis: torch.repeat_interleave(x, n, dim=axis))(k_cache[:, :, Sk - W:, :], rep, axis=1)
    v = (lambda x, n, axis: torch.repeat_interleave(x, n, dim=axis))(v_cache[:, :, Sk - W:, :], rep, axis=1)
    scores = torch.einsum("bhqd,bhkd->bhqk", q, k) * (Dh ** -0.5)
    p = _softmax(scores, axis=-1)
    o = torch.einsum("bhqk,bhkd->bhqd", p, v)
    return (lambda x, *d: x.permute(*d))(o, 0, 2, 1, 3).reshape(B, Sq, Hq * Dh) @ wo
```

```python
import sys
NAME = "standalone__sliding_block_cached__sampling_kernel"
HDR = open("standalone__sliding_block_cached__sampling.s.ref").read().split("; Override launch")[0]

QD, QC, OP, YP, TS = 0x10000, 0x90000, 0x100000, 0x800000, 0xE00000
OPW, YPW = 24576, 18432
WS_BYTES = 0x1000000
L_QP = 0
L_QF = 28672
L_MX = 36864
L_LS = 37376
L_PB = 37888
L_OF = 54272
L_OB = 57344
LDS_BYTES = L_OB + 65536
LIMIT = 1 << 16
SCALE = 0x3DB8AA3B

def gen(stamps=False, kvflags="nt", wflags=""):
    L = []
    A = L.append
    def nop(n): A(f"s_nop {n-1}")
    stamp_i = [0]
    def stamp():
        if not stamps: return
        i = stamp_i[0]; stamp_i[0] += 1
        A(f"s_memrealtime s[{88+2*i if i<2 else 0}:{89+2*i if i<2 else 0}]") if False else None
        A("s_memrealtime s[96:97]"); A("s_waitcnt lgkmcnt(0)")
        A(f"v_writelane_b32 v7, s96, {i}")
    A(HDR.rstrip())
    A(f"; @launch grid=(256,1,1) block=(512,1,1) lds={LDS_BYTES}")
    A('.amdgcn_target "amdgcn-amd-amdhsa--gfx950"')
    A(".text"); A(f".globl {NAME}"); A(".p2align 8"); A(f".type {NAME},@function"); A(f"{NAME}:")
    A("s_cmp_ge_u32 s2, 256"); A("s_cbranch_scc1 L_end")
    A("s_load_dwordx16 s[8:23], s[0:1], 0")
    if stamps: A("v_mov_b32 v7, 0")
    stamp()
    A("s_and_b32 s24, s2, 3")
    A("s_lshr_b32 s25, s2, 2")
    A("s_and_b32 s26, s25, 7")
    A("s_lshr_b32 s27, s25, 3")
    A("v_lshrrev_b32 v2, 6, v0")
    A("v_and_b32 v1, 63, v0")
    A("v_readfirstlane_b32 s28, v2")
    A("v_and_b32 v3, 15, v1")
    A("v_lshrrev_b32 v4, 4, v1")
    A("v_lshrrev_b32 v5, 1, v3"); A("v_lshlrev_b32 v5, 9, v5")
    A("v_and_b32 v6, 1, v3"); A("v_lshl_or_b32 v5, v6, 6, v5"); A("v_lshl_or_b32 v5, v4, 4, v5")
    A("v_lshlrev_b32 v10, 3, v4"); A("v_lshl_add_u32 v10, v2, 6, v10")
    A("v_lshlrev_b32 v8, 13, v10"); A("v_lshl_or_b32 v8, v3, 3, v8")
    A("v_mul_u32_u24 v9, 896, v3"); A("v_lshl_add_u32 v9, v10, 1, v9")
    A("s_lshl_b32 s29, s25, 22"); A("s_lshl_b32 s3, s24, 18"); A("s_add_u32 s29, s29, s3"); A("s_add_u32 s29, s29, 0x300000")
    A("s_and_b32 s30, s27, 1"); A("s_lshl_b32 s30, s30, 2"); A("s_add_u32 s30, s30, s24")
    A("s_lshl_b32 s3, s26, 10"); A("s_lshl_b32 s31, s30, 7"); A("s_add_u32 s31, s31, s3")
    A("s_lshr_b32 s63, s27, 1")
    A("s_mul_i32 s88, s63, 14336")
    A("s_lshr_b32 s89, s2, 3")
    A("s_add_u32 s90, s89, s28")
    A("s_lshl_b32 s91, s28, 15")
    A("s_waitcnt lgkmcnt(0)")
    def srd(n, lo, hi, off, size):
        if off is None:
            A(f"s_mov_b32 s{n}, s{lo}"); A(f"s_mov_b32 s{n+1}, s{hi}")
        else:
            A(f"s_add_u32 s{n}, s{lo}, {off}"); A(f"s_addc_u32 s{n+1}, s{hi}, 0")
        A(f"s_mov_b32 s{n+2}, {size}"); A(f"s_mov_b32 s{n+3}, 0x20000")
    srd(40, 14, 15, None, 448*8192)
    srd(44, 8, 9, None, 64*896)
    srd(32, 10, 11, "s29", 0x40000)
    A("s_lshl_b32 s3, s63, 7"); A("s_add_u32 s92, s22, s3"); A("s_addc_u32 s93, s23, 0")
    A("s_load_dword s62, s[92:93], 0")
    A("s_cmp_eq_u32 s28, 7"); A("s_cbranch_scc1 L_noqload")
    for st in range(2):
        A(f"buffer_load_dwordx4 v[{96+4*st}:{99+4*st}], v9, s[44:47], s88 offen offset:{64*st} {wflags}")
    for st in range(2):
        for i in range(8):
            A(f"s_add_u32 s3, s31, {(32*st+i)*8192}")
            r = 64 + 16*st + 2*i
            A(f"buffer_load_dwordx2 v[{r}:{r+1}], v8, s[40:43], s3 offen {wflags}")
    A("L_noqload:")
    for gp in range(8):
        A(f"s_add_u32 s3, s90, {gp}"); A("s_and_b32 s3, s3, 7"); A("s_lshl_b32 s3, s3, 12"); A("s_add_u32 s3, s3, s91")
        for t in range(4):
            r = 128 + 16*gp + 4*t
            A(f"buffer_load_dwordx4 v[{r}:{r+3}], v5, s[32:35], s3 offen offset:{128*t} {kvflags}")
    srd(36, 12, 13, "s29", 0x40000)
    srd(48, 16, 17, None, 4096*896)
    srd(52, 22, 23, None, WS_BYTES)
    srd(56, 18, 19, None, 64*896)
    A("s_and_b32 s94, s28, 6")
    for src in range(2):
        A(f"s_add_u32 s95, s94, {src}")
        A("s_add_u32 s98, s95, s89")
        A("s_lshl_b32 s95, s95, 15")
        for gp in range(8):
            d = 72 + 8*src + gp
            A(f"s_add_u32 s3, s98, {gp}"); A("s_and_b32 s3, s3, 7"); A("s_lshl_b32 s3, s3, 12"); A(f"s_add_u32 s{d}, s3, s95")
    A("s_mov_b32 s64, 0x05040100"); A("s_mov_b32 s65, 0x07060302"); A(f"s_mov_b32 s66, {SCALE}")
    A("v_lshlrev_b32 v6, 10, v4"); A("v_lshl_or_b32 v6, v3, 4, v6")
    A("v_and_b32 v10, 1, v2"); A("v_lshl_or_b32 v6, v10, 8, v6")
    A("v_lshlrev_b32 v11, 4, v1")
    A("s_waitcnt lgkmcnt(0)")
    A("s_add_u32 s62, s62, 1"); A("s_or_b32 s60, s62, 0x80000000"); A("s_not_b32 s61, s60")
    A("s_cmp_eq_u32 s28, 7"); A("s_cbranch_scc1 L_noqmm")
    A("s_waitcnt vmcnt(32)")
    for st in range(2):
        for jj in range(4):
            sel = "s64" if jj % 2 == 0 else "s65"
            t = 104 + 4*(jj % 2)
            for p in range(4):
                lo = 64 + 16*st + 2*(2*p) + (jj >> 1); hi = 64 + 16*st + 2*(2*p+1) + (jj >> 1)
                A(f"v_perm_b32 v{t+p}, v{hi}, v{lo}, {sel}")
            nop(2)
            acc = 112 + 4*jj
            c = "0" if st == 0 else f"v[{acc}:{acc+3}]"
            A(f"v_mfma_f32_16x16x32_bf16 v[{acc}:{acc+3}], v[{t}:{t+3}], v[{96+4*st}:{99+4*st}], {c}")
    A("s_lshl_b32 s3, s28, 12"); A("v_add_u32 v12, s3, v11")
    nop(8)
    for jj in range(4):
        A(f"ds_write_b128 v12, v[{112+4*jj}:{115+4*jj}] offset:{L_QP + 1024*jj}")
    A("L_noqmm:")
    A("s_waitcnt lgkmcnt(0)")
    A("s_barrier")
    stamp()
    A("s_cmp_lg_u32 s28, 7"); A("s_cbranch_scc1 L_noqpub")
    for jj in range(4):
        for src in range(7):
            r = 64 + 4*src
            A(f"ds_read_b128 v[{r}:{r+3}], v11 offset:{L_QP + 4096*src + 1024*jj}")
        A("s_waitcnt lgkmcnt(0)")
        for r in range(4):
            A(f"v_add_f32 v{64+r}, v{64+r}, v{68+r}"); A(f"v_add_f32 v{72+r}, v{72+r}, v{76+r}")
            A(f"v_add_f32 v{80+r}, v{80+r}, v{84+r}"); A(f"v_add_f32 v{64+r}, v{64+r}, v{88+r}")
            A(f"v_add_f32 v{72+r}, v{72+r}, v{80+r}"); A(f"v_add_f32 v{112+4*jj+r}, v{64+r}, v{72+r}")
    for r in range(4):
        A(f"v_cvt_pk_bf16_f32 v{64+2*r}, v{112+r}, v{116+r}")
        A(f"v_cvt_pk_bf16_f32 v{65+2*r}, v{120+r}, v{124+r}")
    for u in range(2):
        A(f"v_bitop3_b32 v{72+2*u}, v{64+4*u}, v{66+4*u}, s60 bitop3:0x96")
        A(f"v_bitop3_b32 v{73+2*u}, v{65+4*u}, v{67+4*u}, s61 bitop3:0x96")
    A("s_lshl_b32 s3, s63, 4"); A("s_add_u32 s3, s3, s26"); A("s_lshl_b32 s3, s3, 9")
    A("s_lshr_b32 s95, s30, 2"); A("s_lshl_b32 s95, s95, 8"); A("s_add_u32 s3, s3, s95")
    A("s_and_b32 s95, s30, 3"); A("s_lshl_b32 s95, s95, 3"); A("s_add_u32 s3, s3, s95")
    A("v_lshrrev_b32 v12, 3, v3"); A("v_lshlrev_b32 v12, 12, v12")
    A("v_and_b32 v13, 7, v3"); A("v_lshl_add_u32 v12, v13, 5, v12"); A("v_lshl_add_u32 v12, v4, 1, v12")
    A("v_add_u32 v12, s3, v12")
    A("v_lshlrev_b32 v13, 4, v12"); A("v_lshlrev_b32 v14, 3, v12")
    A(f"s_mov_b32 s3, {QD}"); A(f"s_mov_b32 s95, {QC}")
    A("buffer_store_dwordx4 v[64:67], v13, s[52:55], s3 offen sc1")
    A("buffer_store_dwordx4 v[68:71], v13, s[52:55], s3 offen offset:16 sc1")
    A("buffer_store_dwordx4 v[72:75], v14, s[52:55], s95 offen sc1")
    A("L_noqpub:")
    A("s_lshl_b32 s3, s25, 9"); A("v_add_u32 v12, s3, v0")
    nop(2)
    A("v_lshlrev_b32 v13, 4, v12"); A("v_lshlrev_b32 v14, 3, v12")
    A(f"s_mov_b32 s67, {QD}"); A(f"s_mov_b32 s68, {QC}")
    A("s_waitcnt vmcnt(16)")
    stamp()
    A("buffer_load_dwordx4 v[16:19], v13, s[52:55], s67 offen sc1")
    A("buffer_load_dwordx2 v[20:21], v14, s[52:55], s68 offen sc1")
    def vload(bt, base):
        src, beta = bt >> 1, bt & 1
        for i in range(8):
            r = base + 4*i
            A(f"buffer_load_dwordx4 v[{r}:{r+3}], v6, s[36:39], s{72+8*src+4*beta+(i>>1)} offen offset:{512*(i&1)} {kvflags}")
    vload(0, 64); vload(1, 96)
    A(f"s_mov_b32 s69, {LIMIT}")
    A("s_waitcnt vmcnt(16)")
    A("L_qchk:")
    A("v_bitop3_b32 v22, v16, v18, s60 bitop3:0x96"); A("v_bitop3_b32 v23, v17, v19, s61 bitop3:0x96")
    A("v_xor_b32 v22, v22, v20"); A("v_xor_b32 v23, v23, v21"); A("v_or_b32 v22, v22, v23")
    A("v_cmp_ne_u32 vcc, 0, v22")
    A("s_cbranch_vccz L_qok")
    A("s_sub_u32 s69, s69, 1"); A("s_cbranch_scc1 L_qok")
    A("s_mov_b64 exec, vcc"); A("s_sleep 4")
    A("buffer_load_dwordx4 v[16:19], v13, s[52:55], s67 offen sc1")
    A("buffer_load_dwordx2 v[20:21], v14, s[52:55], s68 offen sc1")
    A("s_waitcnt vmcnt(0)")
    A("s_branch L_qchk")
    A("L_qok:")
    A("s_mov_b64 exec, -1")
    A("v_and_b32 v12, 31, v0"); A("v_lshlrev_b32 v12, 8, v12"); A("v_lshrrev_b32 v13, 5, v0"); A("v_lshl_add_u32 v12, v13, 4, v12")
    A(f"ds_write_b128 v12, v[16:19] offset:{L_QF}")
    A("s_waitcnt lgkmcnt(0)")
    A("s_barrier")
    stamp()
    A("v_lshlrev_b32 v12, 8, v4"); A("v_lshl_add_u32 v12, v3, 4, v12")
    for f in range(8):
        A(f"ds_read_b128 v[{32+4*f}:{35+4*f}], v12 offset:{L_QF + 1024*f}")
    A("s_waitcnt lgkmcnt(0)")
    for gp in range(8):
        for t in range(4):
            r = 128 + 16*gp + 4*t
            for hh in range(2):
                acc = 8 + 4*hh
                c = "0" if t == 0 else f"v[{acc}:{acc+3}]"
                f = 2*t + hh
                A(f"v_mfma_f32_16x16x32_bf16 v[{acc}:{acc+3}], v[{r}:{r+3}], v[{32+4*f}:{35+4*f}], {c}")
        if gp == 1: vload(2, 128)
        elif gp == 3: vload(3, 160)
        else: nop(8)
        A(f"v_add_f32 v{16+2*gp}, v8, v13"); A(f"v_add_f32 v{17+2*gp}, v10, v15")
    A("v_max3_f32 v8, v16, v17, v18")
    for i in range(19, 31, 2):
        A(f"v_max3_f32 v8, v8, v{i}, v{i+1}")
    A("v_max_f32 v8, v8, v31")
    def xreduce(op, r, t):
        A(f"v_mov_b32 v{t}, v{r}"); nop(2); A(f"v_permlane16_swap_b32 v{r}, v{t}"); nop(1); A(f"{op} v{r}, v{r}, v{t}")
        A(f"v_mov_b32 v{t}, v{r}"); nop(2); A(f"v_permlane32_swap_b32 v{r}, v{t}"); nop(1); A(f"{op} v{r}, v{r}, v{t}")
    xreduce("v_max_f32", 8, 9)
    A("v_lshlrev_b32 v12, 5, v3")
    A("s_lshl_b32 s3, s28, 2"); A("v_add_u32 v13, s3, v12")
    A(f"ds_write_b32 v13, v8 offset:{L_MX}")
    A("s_waitcnt lgkmcnt(0)")
    A("s_barrier")
    A(f"ds_read_b128 v[32:35], v12 offset:{L_MX}"); A(f"ds_read_b128 v[36:39], v12 offset:{L_MX+16}")
    A("s_waitcnt lgkmcnt(0)")
    A("v_max3_f32 v8, v32, v33, v34"); A("v_max3_f32 v8, v8, v35, v36"); A("v_max3_f32 v8, v8, v37, v38"); A("v_max_f32 v8, v8, v39")
    A("v_mul_f32 v9, s66, v8"); A("v_sub_f32 v9, 0, v9")
    for i in range(16):
        A(f"v_fma_f32 v{16+i}, v{16+i}, s66, v9")
    for i in range(16):
        A(f"v_exp_f32 v{16+i}, v{16+i}")
    nop(1)
    A("v_add_f32 v10, v16, v17")
    for i in range(2, 16):
        A(f"v_add_f32 v10, v10, v{16+i}")
    for p in range(8):
        A(f"v_cvt_pk_bf16_f32 v{32+p}, v{16+2*p}, v{17+2*p}")
    xreduce("v_add_f32", 10, 14)
    A("v_lshlrev_b32 v11, 4, v1")
    A("s_lshl_b32 s3, s28, 11"); A("v_add_u32 v14, s3, v11")
    A(f"ds_write_b128 v14, v[32:35] offset:{L_PB}"); A(f"ds_write_b128 v14, v[36:39] offset:{L_PB+1024}")
    A(f"ds_write_b32 v13, v10 offset:{L_LS}")
    A("s_waitcnt lgkmcnt(0)")
    A("s_barrier")
    stamp()
    A("s_lshl_b32 s3, s94, 11"); A("v_add_u32 v14, s3, v11")
    for bt in range(4):
        A(f"ds_read_b128 v[{16+4*bt}:{19+4*bt}], v14 offset:{L_PB + 1024*bt}")
    A(f"ds_read_b128 v[32:35], v12 offset:{L_LS}"); A(f"ds_read_b128 v[36:39], v12 offset:{L_LS+16}")
    A("v_mul_u32_u24 v15, 28672, v4"); A("v_lshl_add_u32 v15, v3, 3, v15")
    A("s_lshl_b32 s3, s28, 7"); A("v_add_u32 v15, s3, v15")
    A("s_lshl_b32 s70, s26, 2"); A("s_add_u32 s70, s70, s24"); A("s_mul_i32 s70, s70, 114688")
    A("s_waitcnt lgkmcnt(0)")
    A("v_add_f32 v32, v32, v33"); A("v_add_f32 v34, v34, v35"); A("v_add_f32 v36, v36, v37"); A("v_add_f32 v38, v38, v39")
    A("v_add_f32 v32, v32, v34"); A("v_add_f32 v36, v36, v38"); A("v_add_f32 v9, v32, v36")
    def pv(bt, base):
        for jj in range(8):
            sel = "s64" if jj % 2 == 0 else "s65"
            t = 32 + 4*(jj % 4)
            for p in range(4):
                lo = base + 4*(2*p) + (jj >> 1); hi = base + 4*(2*p+1) + (jj >> 1)
                A(f"v_perm_b32 v{t+p}, v{hi}, v{lo}, {sel}")
            if jj >= 1:
                pj = jj - 1; pt = 32 + 4*(pj % 4); acc = 192 + 4*pj
                c = "0" if bt == 0 else f"v[{acc}:{acc+3}]"
                A(f"v_mfma_f32_16x16x32_bf16 v[{acc}:{acc+3}], v[{pt}:{pt+3}], v[{16+4*bt}:{19+4*bt}], {c}")
        nop(2)
        acc = 192 + 28; c = "0" if bt == 0 else f"v[{acc}:{acc+3}]"
        A(f"v_mfma_f32_16x16x32_bf16 v[{acc}:{acc+3}], v[44:47], v[{16+4*bt}:{19+4*bt}], {c}")
    A("s_waitcnt vmcnt(24)"); pv(0, 64)
    A("s_waitcnt vmcnt(16)"); pv(1, 96)
    A("s_cmp_eq_u32 s28, 7"); A("s_cbranch_scc1 L_nowo")
    for tau in range(4):
        for i in range(8):
            e = 2*tau + (i >> 2); row = 8*(i & 3) + e
            so = (8*(i & 3) + (e & 4)) * 896
            A(f"s_add_u32 s3, s70, {so}")
            r = 64 + 16*tau + 2*i
            A(f"buffer_load_dwordx2 v[{r}:{r+1}], v15, s[48:51], s3 offen offset:{(e&3)*896} {wflags}")
    A("s_waitcnt vmcnt(40)"); pv(2, 128)
    A("s_waitcnt vmcnt(32)"); pv(3, 160)
    A("s_branch L_pvdone")
    A("L_nowo:")
    A("s_waitcnt vmcnt(8)"); pv(2, 128)
    A("s_waitcnt vmcnt(0)"); pv(3, 160)
    A("L_pvdone:")
    stamp()
    A("s_lshl_b32 s3, s28, 13"); A("v_add_u32 v14, s3, v11")
    nop(8)
    for jj in range(8):
        A(f"ds_write_b128 v14, v[{192+4*jj}:{195+4*jj}] offset:{L_OB + 1024*jj}")
    A("s_and_b32 s3, s28, 1"); A("s_lshl_b32 s3, s3, 13"); A("s_lshl_b32 s95, s94, 10"); A("s_add_u32 s3, s3, s95")
    A(f"s_add_u32 s3, s3, {L_OB}"); A("v_add_u32 v14, s3, v11")
    A("s_waitcnt lgkmcnt(0)")
    A("s_barrier")
    for kq in range(4):
        for e in range(2):
            r = 128 + 8*kq + 4*e
            A(f"ds_read_b128 v[{r}:{r+3}], v14 offset:{16384*kq + 1024*e}")
    A(f"s_mul_i32 s3, s2, {OPW}"); A(f"s_add_u32 s67, s3, {OP}"); A("s_add_u32 s68, s67, 8192"); A("s_add_u32 s69, s67, 16384")
    A("v_lshlrev_b32 v13, 4, v0")
    A("s_waitcnt lgkmcnt(0)")
    for i in range(8):
        A(f"v_add_f32 v{128+i}, v{128+i}, v{136+i}"); A(f"v_add_f32 v{144+i}, v{144+i}, v{152+i}")
    for i in range(8):
        A(f"v_add_f32 v{128+i}, v{128+i}, v{144+i}")
    A("v_mov_b32 v136, v8"); A("v_mov_b32 v137, v9")
    A("v_bitop3_b32 v138, v128, v130, s60 bitop3:0x96"); A("v_bitop3_b32 v139, v129, v131, s61 bitop3:0x96")
    A("v_bitop3_b32 v138, v138, v132, v134 bitop3:0x96"); A("v_bitop3_b32 v139, v139, v133, v135 bitop3:0x96")
    A("v_xor_b32 v138, v138, v136"); A("v_xor_b32 v139, v139, v137")
    A("buffer_store_dwordx4 v[128:131], v13, s[52:55], s67 offen sc1")
    A("buffer_store_dwordx4 v[132:135], v13, s[52:55], s68 offen sc1")
    A("buffer_store_dwordx4 v[136:139], v13, s[52:55], s69 offen sc1")
    stamp()
    A("v_and_b32 v12, 3, v1"); A(f"v_mul_u32_u24 v12, {OPW}, v12")
    A("v_bfe_u32 v13, v1, 2, 3"); A("v_lshl_add_u32 v12, v13, 4, v12")
    A("v_lshrrev_b32 v14, 5, v1"); A("v_lshl_add_u32 v12, v14, 8, v12")
    A("s_and_b32 s3, s24, 1"); A("s_add_u32 s3, s3, s94"); A("s_lshl_b32 s3, s3, 10")
    A("s_lshr_b32 s95, s24, 1"); A("s_lshl_b32 s95, s95, 7"); A("s_add_u32 s3, s3, s95")
    A("s_and_b32 s95, s28, 1"); A("s_lshl_b32 s95, s95, 9"); A("s_add_u32 s3, s3, s95")
    A(f"s_mul_i32 s95, s25, {4*OPW}"); A("s_add_u32 s3, s3, s95")
    A(f"s_add_u32 s67, s3, {OP}"); A("s_add_u32 s68, s67, 8192"); A("s_add_u32 s69, s67, 16384")
    A("v_lshlrev_b32 v13, 4, v13"); A("v_lshl_add_u32 v13, v14, 7, v13"); A("s_lshl_b32 s3, s28, 8"); A("v_add_u32 v13, s3, v13")
    A(f"s_mov_b32 s71, {LIMIT}")
    A("L_og:")
    A("buffer_load_dwordx4 v[144:147], v12, s[52:55], s67 offen sc1")
    A("buffer_load_dwordx4 v[148:151], v12, s[52:55], s68 offen sc1")
    A("buffer_load_dwordx4 v[152:155], v12, s[52:55], s69 offen sc1")
    A("s_waitcnt vmcnt(0)")
    A("v_bitop3_b32 v156, v144, v146, s60 bitop3:0x96"); A("v_bitop3_b32 v157, v145, v147, s61 bitop3:0x96")
    A("v_bitop3_b32 v156, v156, v148, v150 bitop3:0x96"); A("v_bitop3_b32 v157, v157, v149, v151 bitop3:0x96")
    A("v_bitop3_b32 v156, v156, v152, v154 bitop3:0x96"); A("v_bitop3_b32 v157, v157, v153, v155 bitop3:0x96")
    A("v_or_b32 v156, v156, v157")
    A("v_cmp_ne_u32 vcc, 0, v156")
    A("s_cbranch_vccz L_ogok")
    A("s_sub_u32 s71, s71, 1"); A("s_cbranch_scc1 L_ogok")
    A("s_mov_b64 exec, vcc"); A("s_sleep 2")
    A("s_branch L_og")
    A("L_ogok:")
    A("s_mov_b64 exec, -1")
    stamp()
    QP1 = "quad_perm:[1,0,3,2] row_mask:0xf bank_mask:0xf"; QP2 = "quad_perm:[2,3,0,1] row_mask:0xf bank_mask:0xf"
    nop(5)
    A(f"v_max_f32_dpp v156, v152, v152 {QP1}"); nop(2)
    A(f"v_max_f32_dpp v156, v156, v156 {QP2}")
    A("v_sub_f32 v156, v152, v156"); A("v_mul_f32 v156, s66, v156"); A("v_exp_f32 v156, v156"); nop(1)
    A("v_mul_f32 v153, v153, v156"); nop(2)
    A(f"v_add_f32_dpp v153, v153, v153 {QP1}"); nop(2)
    A(f"v_add_f32_dpp v153, v153, v153 {QP2}")
    A("v_rcp_f32 v153, v153"); nop(1)
    A("v_mul_f32 v156, v156, v153")
    for i in range(8): A(f"v_mul_f32 v{144+i}, v{144+i}, v156")
    for i in range(8): A(f"v_add_f32_dpp v{144+i}, v{144+i}, v{144+i} {QP1}")
    for i in range(8): A(f"v_add_f32_dpp v{144+i}, v{144+i}, v{144+i} {QP2}")
    for p in range(4): A(f"v_cvt_pk_bf16_f32 v{144+p}, v{144+2*p}, v{145+2*p}")
    A(f"ds_write_b128 v13, v[144:147] offset:{L_OF}")
    A("s_waitcnt lgkmcnt(0)")
    A("s_barrier")
    A("s_cmp_eq_u32 s28, 7"); A("s_cbranch_scc1 L_fin")
    A("v_and_b32 v12, 7, v1"); A("v_lshlrev_b32 v13, 4, v12"); A("v_lshl_add_u32 v13, v4, 7, v13")
    for tau in range(4):
        A(f"ds_read_b128 v[{16+4*tau}:{19+4*tau}], v13 offset:{L_OF + 512*tau}")
    A("s_waitcnt lgkmcnt(0)")
    for tau in range(4):
        for jj in range(4):
            sel = "s64" if jj % 2 == 0 else "s65"
            t = 32 + 4*jj
            for p in range(4):
                lo = 64 + 16*tau + 2*(2*p) + (jj >> 1); hi = 64 + 16*tau + 2*(2*p+1) + (jj >> 1)
                A(f"v_perm_b32 v{t+p}, v{hi}, v{lo}, {sel}")
        nop(2)
        for jj in range(4):
            t = 32 + 4*jj; acc = 128 + 4*jj
            c = "0" if tau == 0 else f"v[{acc}:{acc+3}]"
            A(f"v_mfma_f32_16x16x32_bf16 v[{acc}:{acc+3}], v[{t}:{t+3}], v[{16+4*tau}:{19+4*tau}], {c}")
    A("v_mul_u32_u24 v12, 56, v12"); A("v_lshl_add_u32 v12, v4, 1, v12"); A("v_lshrrev_b32 v13, 3, v3"); A("v_add_u32 v12, v12, v13")
    A("s_lshl_b32 s3, s28, 3"); A("v_add_u32 v12, s3, v12")
    A("v_cmp_ne_u32 vcc, 0, v13")
    A("v_lshlrev_b32 v13, 4, v12"); A("v_lshlrev_b32 v14, 3, v12")
    A(f"s_mul_i32 s3, s2, {YPW}"); A(f"s_add_u32 s67, s3, {YP}"); A("s_add_u32 s68, s67, 7168"); A("s_add_u32 s69, s67, 14336")
    nop(2)
    for rr in range(2):
        for jj in range(4):
            A(f"v_cndmask_b32 v{144+4*rr+jj}, v{128+4*jj+rr}, v{128+4*jj+2+rr}, vcc")
    A("v_bitop3_b32 v152, v144, v146, s60 bitop3:0x96"); A("v_bitop3_b32 v153, v145, v147, s61 bitop3:0x96")
    A("v_bitop3_b32 v152, v152, v148, v150 bitop3:0x96"); A("v_bitop3_b32 v153, v153, v149, v151 bitop3:0x96")
    A("buffer_store_dwordx4 v[144:147], v13, s[52:55], s67 offen sc1")
    A("buffer_store_dwordx4 v[148:151], v13, s[52:55], s68 offen sc1")
    A("buffer_store_dwordx2 v[152:153], v14, s[52:55], s69 offen sc1")
    stamp()
    A("s_and_b32 s3, s2, 31"); A("s_mul_i32 s3, s3, 14"); A("s_lshl_b32 s95, s28, 1"); A("s_add_u32 s3, s3, s95")
    A("v_lshrrev_b32 v12, 5, v1"); A("v_add_u32 v12, s3, v12")
    A("v_and_b32 v15, 31, v1"); A(f"v_mul_u32_u24 v15, {YPW}, v15")
    A("v_lshl_add_u32 v13, v12, 4, v15"); A("v_lshl_add_u32 v14, v12, 3, v15")
    A(f"s_mul_i32 s3, s27, {32*YPW}"); A(f"s_add_u32 s67, s3, {YP}"); A("s_add_u32 s68, s67, 7168"); A("s_add_u32 s69, s67, 14336")
    A(f"s_mov_b32 s71, {LIMIT}")
    A("L_yg:")
    A("buffer_load_dwordx4 v[160:163], v13, s[52:55], s67 offen sc1")
    A("buffer_load_dwordx4 v[164:167], v13, s[52:55], s68 offen sc1")
    A("buffer_load_dwordx2 v[168:169], v14, s[52:55], s69 offen sc1")
    A("s_waitcnt vmcnt(0)")
    A("v_bitop3_b32 v170, v160, v162, s60 bitop3:0x96"); A("v_bitop3_b32 v171, v161, v163, s61 bitop3:0x96")
    A("v_bitop3_b32 v170, v170, v164, v166 bitop3:0x96"); A("v_bitop3_b32 v171, v171, v165, v167 bitop3:0x96")
    A("v_xor_b32 v170, v170, v168"); A("v_xor_b32 v171, v171, v169")
    A("v_or_b32 v170, v170, v171")
    A("v_cmp_ne_u32 vcc, 0, v170")
    A("s_cbranch_vccz L_ygok")
    A("s_sub_u32 s71, s71, 1"); A("s_cbranch_scc1 L_ygok")
    A("s_mov_b64 exec, vcc"); A("s_sleep 2")
    A("s_branch L_yg")
    A("L_ygok:")
    A("s_mov_b64 exec, -1")
    stamp()
    nop(5)
    for mode in (QP1, QP2, "row_half_mirror row_mask:0xf bank_mask:0xf", "row_mirror row_mask:0xf bank_mask:0xf",
                 "row_bcast:15 row_mask:0xa bank_mask:0xf"):
        for i in range(8): A(f"v_add_f32_dpp v{160+i}, v{160+i}, v{160+i} {mode}")
    for p in range(4): A(f"v_cvt_pk_bf16_f32 v{160+p}, v{160+2*p}, v{161+2*p}")
    A("v_lshlrev_b32 v13, 4, v12"); A("s_mul_i32 s3, s27, 7168")
    A("s_mov_b32 exec_lo, 0x10000"); A("s_mov_b32 exec_hi, 0x10000")
    A("buffer_store_dwordx4 v[160:163], v13, s[56:59], s3 offen")
    A("s_mov_b64 exec, -1")
    A("s_and_b32 s3, s2, 63"); A("s_or_b32 s3, s3, s28"); A("s_cmp_lg_u32 s3, 0"); A("s_cbranch_scc1 L_fin")
    A("s_lshl_b32 s3, s63, 7"); A("v_mov_b32 v12, s3"); A("v_mov_b32 v13, s62")
    A("s_mov_b64 exec, 1")
    A("buffer_store_dword v13, v12, s[52:55], 0 offen sc1")
    A("s_mov_b64 exec, -1")
    A("L_fin:")
    if stamps:
        stamp()
        A("s_lshl_b32 s3, s2, 3"); A("s_add_u32 s3, s3, s28"); A("s_lshl_b32 s3, s3, 8"); A(f"s_add_u32 s3, s3, {TS}")
        A("v_lshlrev_b32 v12, 2, v1")
        A("buffer_store_dword v7, v12, s[52:55], s3 offen")
    A("L_end:"); A("s_endpgm")
    A('.section .rodata,"a"'); A(".p2align 6"); A(f".amdhsa_kernel {NAME}")
    A("  .amdhsa_next_free_vgpr 256"); A("  .amdhsa_next_free_sgpr 102"); A("  .amdhsa_accum_offset 256")
    A("  .amdhsa_group_segment_fixed_size 0"); A("  .amdhsa_kernarg_size 64"); A("  .amdhsa_user_sgpr_count 2")
    A("  .amdhsa_user_sgpr_kernarg_segment_ptr 1"); A("  .amdhsa_system_sgpr_workgroup_id_x 1")
    A("  .amdhsa_float_denorm_mode_32 3")
    A(".end_amdhsa_kernel")
    return "\n".join(x for x in L if x is not None) + "\n"

if __name__ == "__main__":
    open("v1.s", "w").write(gen())
    open("v1_st.s", "w").write(gen(stamps=True))
```
